```python
import torch

def _softmax(x, axis=-1):
    return torch.softmax(x, dim=axis)
def _gelu(x):
    return torch.nn.functional.gelu(x, approximate="tanh")
def _silu(x):
    return torch.nn.functional.silu(x)
def _sigmoid(x):
    return torch.sigmoid(x)
def _layernorm(x, axis=-1, eps=1e-5):
    m = x.mean(dim=axis, keepdim=True)
    v = x.var(dim=axis, keepdim=True, unbiased=False)
    return (x - m) / torch.sqrt(v + eps)
def _scatter_add(tgt, idx, src, axis=0):
    return tgt.clone().index_add_(axis, idx, src)
def _segment_sum(src, seg, n):
    out = torch.zeros((n,) + src.shape[1:], dtype=src.dtype)
    return out.index_add_(0, seg, src)
def _pad(x, pw):
    flat = tuple(v for pair in reversed(pw) for v in pair)
    return torch.nn.functional.pad(x, flat)

kernel_name = 'parallel_sum__mha_block__dense_activation_squared_relu__prompt'

def setup_inputs():

    _w = (lambda a: (lambda t: t.to(torch.bfloat16) if t.is_floating_point() else t)(torch.as_tensor(a)))
    def _A_setup():
        B, S, D, H = 1, 2048, 448, 16
        return {
            "x": _w((lambda *s: torch.randn(*s, dtype=torch.bfloat16) * 0.05)(B, S, D)),
            "wqkv": _w((lambda *s: torch.randn(*s, dtype=torch.bfloat16) * 0.2)(D, 3 * D)),
            "wo": _w((lambda *s: torch.randn(*s, dtype=torch.bfloat16) * 0.1)(D, D)),
        }
    _A_in = _A_setup()

    def _B_setup():
        B, S, D, F = 1, 2048, 448, 1792
        return {
            "x": _w((lambda *s: torch.randn(*s, dtype=torch.bfloat16) * 0.05)(B, S, D)),
            "w1": _w((lambda *s: torch.randn(*s, dtype=torch.bfloat16) * 0.1)(D, F)),
            "b1": _w((lambda *s: torch.randn(*s, dtype=torch.bfloat16) * 0.8)(F)),
            "w2": _w((lambda *s: torch.randn(*s, dtype=torch.bfloat16) * 0.1)(F, D)),
            "b2": _w((lambda *s: torch.randn(*s, dtype=torch.bfloat16) * 12.8)(D)),
        }
    _B_in = _B_setup()

    return {
        "A_x": _A_in["x"],
        "A_wqkv": _A_in["wqkv"],
        "A_wo": _A_in["wo"],
        "B_x": _B_in["x"],
        "B_w1": _B_in["w1"],
        "B_b1": _B_in["b1"],
        "B_w2": _B_in["w2"],
        "B_b2": _B_in["b2"],
    }

def reference(A_x, A_wqkv, A_wo, B_x, B_w1, B_b1, B_w2, B_b2):
    def _A_ref(x, wqkv, wo):
        B, S, D = x.shape
        H = 16
        Dh = D // H
        qkv = (lambda x, *d: x.permute(*d))((x @ wqkv).reshape(B, S, 3, H, Dh), 2, 0, 3, 1, 4)
        q, k, v = qkv[0], qkv[1], qkv[2]
        scores = torch.einsum("bhqd,bhkd->bhqk", q, k) * (Dh ** -0.5)
        p = _softmax(scores, axis=-1)
        o = torch.einsum("bhqk,bhkd->bhqd", p, v)
        return (lambda x, *d: x.permute(*d))(o, 0, 2, 1, 3).reshape(B, S, D) @ wo

    def _B_ref(x, w1, b1, w2, b2):
        h = torch.einsum("bsd,df->bsf", x, w1) + b1
        zero = torch.zeros_like(h)
        r = torch.where(h > zero, h, zero)
        h = r * r
        out = torch.einsum("bsf,fd->bsd", h, w2) + b2
        return out

    x = A_x
    xn = _layernorm(x, axis=-1)
    return x + _A_ref(xn, A_wqkv, A_wo) + _B_ref(xn, B_w1, B_b1, B_w2, B_b2)
```

```python
import re

TRANS = {"v_exp_f32","v_log_f32","v_rcp_f32","v_rsq_f32","v_sqrt_f32","v_sin_f32","v_cos_f32","v_rcp_iflag_f32"}
RMW_DST = {"v_fmac_f32","v_dot2c_f32_bf16","v_writelane_b32"}

def split_ops(s):
    ops=[]; depth=0; cur=""
    for ch in s:
        if ch in "[(": depth+=1
        if ch in "])": depth-=1
        if ch=="," and depth==0:
            ops.append(cur.strip()); cur=""
        else: cur+=ch
    if cur.strip(): ops.append(cur.strip())
    return ops

def regs_of(tok):
    tok=tok.strip()
    t=tok.lstrip("-")
    m=re.match(r"^abs\((.*)\)$",t)
    if m: t=m.group(1)
    t=t.strip("|")
    m=re.match(r"^([vsa])(\d+)$",t)
    if m: return [(m.group(1),int(m.group(2)))]
    m=re.match(r"^([vsa])\[(\d+):(\d+)\]$",t)
    if m: return [(m.group(1),i) for i in range(int(m.group(2)),int(m.group(3))+1)]
    if t=="vcc": return [("vcc",0),("vcc",1)]
    if t=="vcc_lo": return [("vcc",0)]
    if t=="vcc_hi": return [("vcc",1)]
    if t=="exec": return [("exec",0),("exec",1)]
    if t=="exec_lo": return [("exec",0)]
    if t=="exec_hi": return [("exec",1)]
    if t=="m0": return [("m0",0)]
    if t=="scc": return [("scc",0)]
    return []

class Ins:
    __slots__=("text","mn","kind","dst","src","mfA","mfB","mfC","passes","dpp","lanesel","storedata","isbranch","target","nops","uncond","smask")
    def __init__(self,text):
        self.text=text
        body=text.split(";")[0].split("//")[0].strip()
        parts=body.split(None,1)
        mn=parts[0]; rest=parts[1] if len(parts)>1 else ""
        self.mn=mn; self.dst=[]; self.src=[]; self.mfA=[]; self.mfB=[]; self.mfC=[]; self.passes=0
        self.dpp=[]; self.lanesel=[]; self.storedata=[]; self.isbranch=False; self.target=None; self.nops=1; self.uncond=False; self.smask=[]
        ops=split_ops(rest)
        mods=""
        if ops:
            last=ops[-1]
            mm=re.match(r"^(\S+(?:\s*\[[^\]]*\])?)\s*(.*)$",last)
            if mm and not last.startswith("hwreg") :
                ops[-1]=mm.group(1); mods=mm.group(2)
        base=re.sub(r"_(e32|e64|dpp|sdwa)$","",mn)
        R=lambda i: regs_of(ops[i]) if i<len(ops) else []
        if mn.startswith("v_mfma"):
            self.kind="mfma"
            self.dst=R(0); self.mfA=R(1); self.mfB=R(2); self.mfC=R(3)
            self.src=self.mfA+self.mfB+self.mfC
            self.passes=8 if "32x32x16" in mn else (4 if "16x16x32" in mn else 16)
        elif mn.startswith("v_"):
            self.kind="trans" if base in TRANS else "valu"
            if base.startswith("v_cmp"):
                self.dst=R(0); self.src=[r for i in range(1,len(ops)) for r in R(i)]
            elif base in ("v_add_co_u32","v_sub_co_u32","v_addc_co_u32","v_subb_co_u32"):
                self.dst=R(0)+R(1); self.src=[r for i in range(2,len(ops)) for r in R(i)]
            elif base.startswith("v_permlane32_swap") or base.startswith("v_permlane16_swap"):
                self.kind="permlane"; self.dst=R(0)+R(1); self.src=R(0)+R(1)
            elif base in ("v_readlane_b32","v_readfirstlane_b32"):
                self.kind="readlane"; self.dst=R(0); self.src=R(1); self.lanesel=R(2)
            elif base=="v_writelane_b32":
                self.dst=R(0); self.src=R(1)+R(0); self.lanesel=R(2)
            else:
                self.dst=R(0); self.src=[r for i in range(1,len(ops)) for r in R(i)]
                if base in RMW_DST: self.src+=R(0)
                if base=="v_cndmask_b32" and len(ops)==3: self.src+=[("vcc",0),("vcc",1)]
            if mn.endswith("_dpp") or "quad_perm" in mods or "row_" in mods:
                self.dpp=R(1); self.src+=R(0)
        elif mn.startswith("ds_"):
            self.kind="ds"
            if mn.startswith("ds_read") or "_rtn" in mn or mn.startswith("ds_bpermute") or mn.startswith("ds_swizzle") or mn.startswith("ds_permute"):
                self.dst=R(0); self.src=[r for i in range(1,len(ops)) for r in R(i)]
            else:
                self.src=[r for i in range(0,len(ops)) for r in R(i)]
        elif mn.startswith("buffer_") or mn.startswith("global_"):
            self.kind="vmem"
            toks=(mods.split() if mods else [])
            islds = "lds" in toks
            if "load" in mn and not islds:
                self.dst=R(0); self.src=[r for i in range(1,len(ops)) for r in R(i)]
            elif "load" in mn and islds:
                self.src=[r for i in range(0,len(ops)) for r in R(i)]+[("m0",0)]; self.kind="vmem_lds"
            elif "store" in mn:
                self.src=[r for i in range(0,len(ops)) for r in R(i)]
                if "x4" in mn or "x3" in mn: self.storedata=R(0)
            elif "atomic" in mn:
                self.src=[r for i in range(0,len(ops)) for r in R(i)]
                if "sc0" in toks: self.dst=R(0)
            else:
                self.src=[r for i in range(0,len(ops)) for r in R(i)]
        elif mn.startswith("s_"):
            self.kind="salu"
            if mn=="s_nop":
                self.nops=int(ops[0],0)+1; self.kind="nop"
            elif mn in ("s_branch",) or mn.startswith("s_cbranch"):
                self.isbranch=True; self.target=ops[0]; self.uncond=(mn=="s_branch")
            elif mn=="s_endpgm":
                self.uncond=True
            elif mn.startswith("s_cmp") or mn in ("s_waitcnt","s_barrier","s_setprio","s_sleep","s_bitcmp0_b32","s_bitcmp1_b32"):
                self.src=[r for i in range(0,len(ops)) for r in R(i)]
            else:
                self.dst=R(0); self.src=[r for i in range(1,len(ops)) for r in R(i)]
                if "saveexec" in mn: self.dst+=[("exec",0),("exec",1)]
        else:
            raise ValueError("unknown instr: "+text)

def isv(r): return r[0] in ("v","a")
def issg(r): return r[0] in ("s","vcc")

class State:
    def __init__(self): self.d={}
    def copy(self):
        s=State(); s.d=dict(self.d); return s
    def merge(self,o):
        for k,a in o.d.items():
            if k not in self.d or a<self.d[k]: self.d[k]=a
    def age(self,n):
        self.d={k:a+n for k,a in self.d.items() if a+n<24}
    def get(self,tag,r):
        return self.d.get((tag,r))

def need(ins,st):
    n=0
    def req(tag,regs,w):
        nonlocal n
        for r in regs:
            a=st.get(tag,r)
            if a is not None and a<w: n=max(n,w-a)
    k=ins.kind
    valu_like = k in ("valu","trans","permlane","readlane")
    if k=="mfma":
        req("vw",[r for r in ins.src if isv(r)],2)
        for p,w in ((8,12),(4,8),(16,20)):
            req(("mD",p),ins.mfA+ins.mfB,w)
        cset=tuple(ins.mfC)
        for p,w in ((8,10),(4,6),(16,18)):
            for r in ins.mfC:
                a=st.get(("mD",p),r)
                if a is not None:
                    same=st.d.get(("mDrange",r))
                    if ("mDr",cset[0],len(cset),p) in st.d and p==ins.passes: continue
                    if a<w: n=max(n,w-a)
        if tuple(ins.dst)!=cset:
            for p,w in ((8,10),(4,6),(16,18)):
                req(("mD",p),ins.dst,0)
    if valu_like or k in ("mfma","ds","vmem"):
        if ins.mn.startswith("v_dot"):
            ab=[r for r in ins.src[:-len(ins.dst)] if isv(r)] if not ins.mn.startswith("v_dot2c") else [r for r in ins.src if isv(r) and r not in ins.dst]
            req("dotw",ab,3)
        else:
            req("dotw",[r for r in ins.src+ins.dst if isv(r)],3)
    if valu_like:
        for p,w in ((8,12),(4,8),(16,20)):
            req(("mD",p),[r for r in ins.src+ins.dst if isv(r)],w)
        for p,w in ((8,7),(4,3),(16,15)):
            req(("mC",p),[r for r in ins.dst if isv(r)],w)
        req("sw_valu",[r for r in ins.src if issg(r)],2)
        req("sw_valu",ins.lanesel,4)
        if k!="trans": req("tw",[r for r in ins.src if isv(r)],1)
        if k=="readlane": req("vw",[r for r in ins.src if isv(r)],1)
        if k=="permlane": req("vw",[r for r in ins.src if isv(r)],2)
        if ins.dpp: req("vw",ins.dpp,2)
        req("sd",[r for r in ins.dst if isv(r)],2)
    if k in ("ds","vmem","vmem_lds"):
        for p,w in ((8,12),(4,8),(16,20)):
            req(("mD",p),[r for r in ins.src+ins.dst if isv(r)],w)
        if k!="ds": req("sw_valu",[r for r in ins.src if issg(r)],5)
        if k=="vmem_lds": req("m0w",[("m0",0)],1)
        req("sd",[r for r in ins.dst if isv(r)],1)
    if k=="salu" :
        req("sw_valu",[r for r in ins.src if issg(r)],1)
        if ins.mn in ("s_cbranch_vccz","s_cbranch_vccnz"): req("sw_valu",[("vcc",0),("vcc",1)],1)
    return n

def apply(ins,st):
    st.age(ins.nops)
    k=ins.kind
    if k in ("valu","trans","permlane","readlane"):
        for r in ins.dst:
            if isv(r):
                st.d[("vw",r)]=0
                if ins.mn.startswith("v_dot"): st.d[("dotw",r)]=0
                else: st.d.pop(("dotw",r),None)
                if k=="trans": st.d[("tw",r)]=0
                else: st.d.pop(("tw",r),None)
                for p in (4,8,16): st.d.pop((("mD",p),r),None)
            elif issg(r): st.d[("sw_valu",r)]=0
    elif k=="mfma":
        for r in ins.dst:
            for p in (4,8,16): st.d.pop((("mD",p),r),None)
            st.d[(("mD",ins.passes),r)]=0
            st.d.pop(("vw",r),None)
        for key in [x for x in st.d if x[0]=="mDr" and (x[1] in ins.dst)]: st.d.pop(key)
        st.d[("mDr",ins.dst[0],len(ins.dst),ins.passes)]=0
        for r in ins.mfC: st.d[(("mC",ins.passes),r)]=0
    elif k=="salu":
        for r in ins.dst:
            if r==("m0",0): st.d[("m0w",r)]=0
            if issg(r): st.d.pop(("sw_valu",r),None)
    elif k in ("ds","vmem"):
        for r in ins.dst:
            st.d.pop(("vw",r),None); st.d.pop(("tw",r),None)
    if ins.storedata:
        for r in ins.storedata: st.d[("sd",r)]=0

class Asm:
    def __init__(self):
        self.items=[]
    def e(self,text):
        for ln in text.strip("\n").split("\n"):
            s=ln.strip()
            if not s: continue
            if s.startswith(";"): self.items.append(("r","    "+s)); continue
            if s.endswith(":") : self.items.append(("l",s[:-1])); continue
            if s.startswith("."): self.items.append(("r",s)); continue
            self.items.append(("i",s))
    def c(self,text): self.items.append(("r","    ; "+text))
    def label(self,name): self.items.append(("l",name))
    def raw(self,text): self.items.append(("r",text))
    def fix_hazards(self,verbose=False):
        total=0
        snaps={}
        for it in range(8):
            out=[]; st=State(); ins_count=0; reach=True
            newsnaps={}
            for kind,t in self.items:
                if kind=="l":
                    if not reach: st=State()
                    for sn in (snaps.get(t),newsnaps.get(t)):
                        if sn is not None: st.merge(sn)
                    reach=True
                    out.append((kind,t)); continue
                if kind=="r":
                    out.append((kind,t)); continue
                ins=Ins(t)
                n=need(ins,st)
                if n>0:
                    nn=n
                    while nn>0:
                        k=min(nn,16)
                        nopi=Ins(f"s_nop {k-1}")
                        out.append(("i",f"s_nop {k-1}")); apply(nopi,st); nn-=k
                    ins_count+=1; total+=n
                    if verbose: print("pad",n,"before",t)
                apply(ins,st)
                out.append((kind,t))
                if ins.isbranch:
                    sn=newsnaps.get(ins.target)
                    if sn is None: newsnaps[ins.target]=st.copy()
                    else: sn.merge(st)
                if ins.uncond: reach=False; st=State()
            self.items=out
            stable = (ins_count==0 and all(k in snaps and snaps[k].d==v.d for k,v in newsnaps.items()))
            snaps=newsnaps
            if stable: break
        return total
    def text(self):
        o=[]
        for kind,t in self.items:
            if kind=="l": o.append(t+":")
            elif kind=="r": o.append(t)
            else: o.append("    "+t)
        return "\n".join(o)+"\n"
```

```python
import sys, math, struct
sys.path.insert(0, "gen")
from asmlib import Asm

NAME = "parallel_sum__mha_block__dense_activation_squared_relu__prompt_kernel"

S_, D_, H_, DH, F_ = 2048, 448, 16, 28, 1792
XROW = 896; WQKV_ROW = 2688; W1_ROW = 3584; W2_ROW = 896; WO_ROW = 896
QSCALE = math.log2(math.e) / math.sqrt(28.0)
def f2u(x): return struct.unpack("<I", struct.pack("<f", x))[0]
M_OFF = 80.0

WS_FLAG = 0
WS_EPOCH = 98304
WS_KV = 0x100000
WS_HF = 0x500000
WS_OF = 0xC00000
WS_WF = 0xE00000
WS_DBG = 0x1100000
WS_SIZE = 0x10000000

L_XN = 0; L_B = 0; L_A = 65536; L_QX = 122880; L_RING = 131072; L_MX = 155648; L_CNT = 159744
L_O = 0
LDS_SIZE = 163840
C_KV, C_H, C_M, C_O, C_P, C_BAD = 0, 4, 8, 12, 16, 20

S_WG=2; S_W=3; S_HEAD=4; S_RB=5; S_RT=6; S_CP=7
R_X=8; R_WQKV=12; R_WO=16; R_W1=20; R_B1=24; R_W2=28; R_B2=32; R_OUT=36; R_WS=40
S_EP=44
S_T=68

def srd(n): return f"s[{n}:{n+3}]"
def vr(a,n=1): return f"v{a}" if n==1 else f"v[{a}:{a+n-1}]"

class G:
    def __init__(self, opts):
        self.o=opts; self.a=Asm(); self.uid=0; self.stamps={}
    def L(self,p="L"):
        self.uid+=1; return f"{p}_{self.uid}"
    def e(self,t): self.a.e(t)
    def c(self,t): self.a.c(t)

    def stamp(self, name, role="m"):
        if not self.o.get("stamps"): return
        lst=self.stamps.setdefault(role,[])
        if name in lst: idx=lst.index(name)
        else:
            lst.append(name); idx=len(lst)-1
        assert idx<32
        e=self.e
        e(f"""s_memtime s[96:97]
s_waitcnt lgkmcnt(0)
s_lshl_b32 s98, s{S_WG}, 4
s_add_u32 s98, s98, s{S_W}
s_lshl_b32 s98, s98, 7
s_add_u32 s98, s98, {WS_DBG + idx*4}
s_mov_b64 s[100:101], exec
s_mov_b64 exec, 1
v_mov_b32 v7, s96
v_mov_b32 v6, s98
buffer_store_dword v7, v6, {srd(R_WS)}, 0 offen
s_mov_b64 exec, s[100:101]""")

    def prologue(self):
        e=self.e
        e(f"""s_cmp_ge_u32 s2, 256
s_cbranch_scc1 L_exit
s_load_dwordx4 s[48:51], s[0:1], 0
s_load_dwordx2 s[52:53], s[0:1], 16
s_load_dwordx4 s[56:59], s[0:1], 32
s_load_dwordx4 s[60:63], s[0:1], 48
s_load_dwordx2 s[64:65], s[0:1], 64
s_load_dwordx2 s[66:67], s[0:1], 80
v_lshrrev_b32 v2, 6, v0
v_and_b32 v1, 63, v0
v_readfirstlane_b32 s{S_W}, v2
s_and_b32 s{S_T}, s2, 7
s_lshl_b32 s{S_T}, s{S_T}, 1
s_bfe_u32 s{S_T+1}, s2, 0x10003
s_add_u32 s{S_HEAD}, s{S_T}, s{S_T+1}
s_lshr_b32 s{S_RB}, s2, 4
s_waitcnt lgkmcnt(0)
s_load_dwordx2 s[{S_EP}:{S_EP+1}], s[66:67], {WS_EPOCH}""")
        for r,src,size in ((R_X,48,S_*0+2048*896),(R_WQKV,50,448*2688),(R_WO,52,448*896),(R_W1,56,448*3584),(R_B1,58,1792*2),(R_W2,60,1792*896),(R_B2,62,448*2),(R_OUT,64,2048*896),(R_WS,66,WS_SIZE)):
            e(f"""s_mov_b32 s{r}, s{src}
s_mov_b32 s{r+1}, s{src+1}
s_mov_b32 s{r+2}, {size}
s_mov_b32 s{r+3}, 0x00020000""")
        e(f"""s_cmp_ge_u32 s{S_W}, 8
s_cbranch_scc1 L_aux""")

    def epoch_finish(self):
        e=self.e
        e(f"""s_waitcnt lgkmcnt(0)
s_mul_i32 s{S_EP}, s{S_EP}, 0x9E3779B2
s_add_u32 s{S_EP}, s{S_EP}, 0x7F4A7C15
s_xor_b32 s{S_EP+1}, s{S_EP+1}, s{S_EP}
s_mul_i32 s{S_EP+1}, s{S_EP+1}, 0x85EBCA6A
s_add_u32 s{S_EP+1}, s{S_EP+1}, 0x2545F491""")

    def publish(self, cnt_off, target, phase, vt=2):
        e=self.e; skip=self.L("L_pub")
        e(f"""s_mov_b64 exec, 1
v_mov_b32 v{vt}, {L_CNT+cnt_off}
v_mov_b32 v{vt+1}, 1
ds_add_rtn_u32 v{vt}, v{vt}, v{vt+1}
s_waitcnt lgkmcnt(0)
v_readfirstlane_b32 s{S_T}, v{vt}
s_cmp_eq_u32 s{S_T}, {target-1}
s_cbranch_scc0 {skip}
s_lshl_b32 s{S_T}, s{S_HEAD}, 4
s_add_u32 s{S_T}, s{S_T}, s{S_RB}
s_lshl_b32 s{S_T}, s{S_T}, 7
s_add_u32 s{S_T}, s{S_T}, {WS_FLAG + phase*256*128}
v_mov_b32 v{vt+2}, s{S_T}
v_mov_b32 v{vt}, s{S_EP}
v_mov_b32 v{vt+1}, s{S_EP+1}
buffer_store_dwordx2 v[{vt}:{vt+1}], v{vt+2}, {srd(R_WS)}, 0 offen sc1
{skip}:
s_mov_b64 exec, -1""")

    def main_ln(self):
        e=self.e; c=self.c
        X=112
        c("---- LN: load 16 rows (2 sets of 8) ----")
        e(f"""s_and_b32 s{S_RT}, s{S_W}, 3
s_lshr_b32 s{S_CP}, s{S_W}, 2
v_lshrrev_b32 v2, 3, v1
v_and_b32 v3, 7, v1
v_mul_u32_u24 v4, 896, v2
v_lshl_add_u32 v4, v3, 4, v4
s_lshl_b32 s{S_T}, s{S_RB}, 7
s_lshl_b32 s{S_T+1}, s{S_RT}, 5
s_add_u32 s{S_T}, s{S_T}, s{S_T+1}
s_lshl_b32 s{S_T+1}, s{S_CP}, 4
s_add_u32 s{S_T}, s{S_T}, s{S_T+1}
s_mul_i32 s{S_T}, s{S_T}, 896
s_add_u32 s{S_T+1}, s{S_T}, 7168""")
        for u in range(2):
            for i in range(7):
                r=X+(u*7+i)*4
                e(f"buffer_load_dwordx4 {vr(r,4)}, v4, {srd(R_X)}, s{S_T+u} offen offset:{i*128}")
        self.main_consts()
        self.epoch_finish()
        S_ONES=87
        e(f"s_mov_b32 s{S_ONES}, 0x3f803f80")
        for u in range(2):
            base=X+u*28
            c(f"stats set {u}")
            e(f"s_waitcnt vmcnt({self.ln_pending(u)})")
            self.stamp(f"x{u}")
            e("v_mov_b32 v24, 0\nv_mov_b32 v25, 0\nv_mov_b32 v26, 0\nv_mov_b32 v27, 0")
            for r in range(28):
                a=24+(r&1); q=26+(r&1)
                e(f"v_dot2_f32_bf16 v{a}, v{base+r}, s{S_ONES}, v{a}")
                e(f"v_dot2_f32_bf16 v{q}, v{base+r}, v{base+r}, v{q}")
            e("v_add_f32 v24, v24, v25\nv_add_f32 v26, v26, v27")
            for mod in ("quad_perm:[1,0,3,2]","quad_perm:[2,3,0,1]","row_half_mirror"):
                e(f"v_add_f32_dpp v24, v24, v24 {mod} row_mask:0xf bank_mask:0xf")
                e(f"v_add_f32_dpp v26, v26, v26 {mod} row_mask:0xf bank_mask:0xf")
            inv=f2u(1.0/448.0)
            e(f"""v_mul_f32 v24, {inv:#x}, v24
v_mul_f32 v26, {inv:#x}, v26
v_fma_f32 v26, -v24, v24, v26
v_max_f32 v26, 0, v26
v_add_f32 v26, {f2u(1e-5):#x}, v26
v_rsq_f32 v28, v26
v_mul_f32 v30, -v24, v28""".replace("v_mul_f32 v30, -v24, v28","v_mul_f32_e64 v30, -v24, v28"))
            c(f"normalize set {u}")
            for r in range(28):
                t=32+(r%4)*2
                e(f"""v_lshlrev_b32 v{t}, 16, v{base+r}
v_and_b32 v{t+1}, 0xffff0000, v{base+r}
v_pk_fma_f32 v[{t}:{t+1}], v[{t}:{t+1}], v[28:29], v[30:31] op_sel_hi:[1,0,0]
v_cvt_pk_bf16_f32 v{base+r}, v{t}, v{t+1}""")
        self.stamp("norm")
        c("---- exchange through LDS (2 rounds) ----")
        e(f"""v_lshrrev_b32 v2, 3, v1
s_lshl_b32 s{S_T}, s{S_CP}, 4
v_add_u32 v2, s{S_T}, v2
v_and_b32 v3, 7, v1
v_and_b32 v5, 1, v1
v_lshl_add_u32 v2, v5, 5, v2
v_xor_b32 v2, v2, v3
v_lshlrev_b32 v2, 4, v2
v_lshrrev_b32 v3, 1, v3
v_lshl_add_u32 v2, v3, 10, v2
s_lshl_b32 s{S_T}, s{S_RT}, 14
v_add_u32 v5, s{S_T}, v2
s_mul_i32 s{S_T+1}, s{S_RT}, 12288
v_add_u32 v6, s{S_T+1}, v2""")
        for u in range(2):
            for i in range(4):
                r=X+(u*7+i)*4
                e(f"ds_write_b128 v5, {vr(r,4)} offset:{L_XN+i*4096+u*128}")
        e(f"v_lshrrev_b32 v3, 5, v1")
        for j in range(4):
            e(f"""v_add_u32 v2, {2*j}, v3
v_xor_b32 v2, v2, v1
v_lshlrev_b32 v2, 4, v2
v_add_u32 v{8+j}, s{S_T}, v2
v_add_u32 v{12+j}, s{S_T+1}, v2""")
        e("s_waitcnt lgkmcnt(0)\ns_barrier")
        for s in range(16):
            e(f"ds_read_b128 {vr(56+4*s,4)}, v{8+(s&3)} offset:{L_XN+s*1024}")
        e("s_waitcnt lgkmcnt(0)\ns_barrier")
        for u in range(2):
            for i in range(4,7):
                r=X+(u*7+i)*4
                e(f"ds_write_b128 v6, {vr(r,4)} offset:{L_XN+(i-4)*4096+u*128}")
        e("s_waitcnt lgkmcnt(0)\ns_barrier")
        for s in range(16,28):
            e(f"ds_read_b128 {vr(56+4*s,4)}, v{12+(s&3)} offset:{L_XN+(s-16)*1024}")
        e("s_waitcnt lgkmcnt(0)")

    def ln_pending(self,u):
        return (7 if u==0 else 0)+2

    def ftile(self):
        e=self.e
        l1=self.L(); l2=self.L()
        e(f"""s_cmp_lt_u32 s{S_HEAD}, 8
s_cbranch_scc0 {l1}
s_lshl_b32 s72, s{S_HEAD}, 2
s_add_u32 s73, s72, 2
s_branch {l2}
{l1}:
s_sub_u32 s74, s{S_HEAD}, 8
s_mul_i32 s72, s74, 3
s_add_u32 s72, s72, 32
s_and_b32 s74, s74, 1
s_add_u32 s73, s72, 2
s_cmp_eq_u32 s74, 0
s_cselect_b32 s73, s73, s72
s_add_u32 s72, s72, s74
{l2}:""")

    def main_consts(self):
        e=self.e
        self.ftile()
        e(f"""s_add_u32 s74, s72, s{S_CP}
s_add_u32 s75, s73, s{S_CP}
s_cmp_lt_u32 s{S_HEAD}, 8
s_cselect_b32 s75, s75, s73
v_lshlrev_b32 v2, 1, v1
v_mov_b32 v3, 0x7ffffff0
v_cmp_gt_u32 vcc, 32, v1
v_cndmask_b32 v2, v3, v2, vcc
s_lshl_b32 s76, s74, 6
s_lshl_b32 s77, s75, 6
buffer_load_ushort v17, v2, {srd(R_B1)}, s76 offen
buffer_load_ushort v18, v2, {srd(R_B1)}, s77 offen""")

    def gemm_consts(self):
        e=self.e
        e(f"""v_lshrrev_b32 v4, 4, v1
v_and_b32 v5, 15, v1
v_lshrrev_b32 v6, 2, v5
v_and_b32 v5, 3, v5
v_lshrrev_b32 v7, 1, v4
v_and_b32 v4, 1, v4
v_lshl_add_u32 v7, v7, 3, v6
v_lshlrev_b32 v4, 5, v4
v_lshl_add_u32 v4, v5, 3, v4
v_lshl_add_u32 v8, v7, 6, v4
v_lshrrev_b32 v6, 1, v6
v_xor_b32 v6, s{S_CP}, v6
v_lshl_add_u32 v4, v6, 6, v4
v_lshl_add_u32 v9, v7, 7, v4
v_mov_b32 v12, 0x3f80
v_mov_b32 v13, 0
v_cmp_gt_u32 vcc, 32, v1
v_cndmask_b32 v12, v13, v12, vcc
v_mov_b32 v14, 0
v_mov_b32 v15, 0
v_mov_b32 v21, 0
v_mov_b32 v22, 0
v_mov_b32 v23, 0
; v10 = lane*16
v_lshlrev_b32 v10, 4, v1
v_and_b32 v4, 31, v1
v_mov_b32 v19, 0
v_mov_b32 v5, 0x3f803f80
v_cmp_eq_u32 vcc, 28, v4
v_cndmask_b32 v19, v19, v5, vcc
v_cmp_le_u32 s[78:79], 28, v4""")

    ACC=40; WR=24; XN=56
    def gemm_loop(self, fmt, w_is_a, aug_bias_reg, slot):
        e=self.e
        areg = 8 if fmt=="S" else 9
        kst = 1024 if fmt=="S" else 2048
        sec = 256 if fmt=="S" else 512
        e(f"v_add_u32 v11, {slot}, v{areg}")
        def rd(s):
            r=self.WR+4*(s&3)
            e(f"ds_read_b64_tr_b16 {vr(r,2)}, v11 offset:{s*kst}")
            e(f"ds_read_b64_tr_b16 {vr(r+2,2)}, v11 offset:{s*kst+sec}")
        for s in range(3): rd(s)
        acc=vr(self.ACC,16)
        first=True
        if aug_bias_reg is not None:
            e(f"v_mov_b32 v20, v{aug_bias_reg}")
            e(f"v_mfma_f32_32x32x16_bf16 {acc}, v[20:23], v[12:15], 0")
            first=False
        for s in range(28):
            if s+3<28: rd(s+3)
            rem=min(3,27-s)
            e(f"s_waitcnt lgkmcnt({2*rem})")
            w=vr(self.WR+4*(s&3),4); x=vr(self.XN+4*s,4)
            A,B=(w,x) if w_is_a else (x,w)
            e(f"v_mfma_f32_32x32x16_bf16 {acc}, {A}, {B}, {'0' if first else acc}")
            first=False

    def epi_pack(self, dst):
        for i in range(8):
            self.e(f"v_cvt_pk_bf16_f32 v{dst+i}, v{self.ACC+2*i}, v{self.ACC+2*i+1}")

    def epi_K(self):
        e=self.e; P=self.ACC
        self.epi_pack(P)
        e(f"""s_mov_b64 exec, 0xffffffff00000000
v_mov_b32 v{P+6}, 0x3f803f80
v_mov_b32 v{P+7}, 0
s_mov_b64 exec, -1""".replace("s_mov_b64 exec, 0xffffffff00000000","s_mov_b32 exec_lo, 0"))
        self.kv_addr(0)
        e(f"""buffer_store_dwordx4 {vr(P,4)}, v10, {srd(R_WS)}, s{S_T} offen sc1
buffer_store_dwordx4 {vr(P+4,4)}, v10, {srd(R_WS)}, s{S_T} offen offset:1024 sc1""")
    def kv_addr(self, which):
        self.e(f"""s_lshl_b32 s{S_T}, s{S_HEAD}, 18
s_lshl_b32 s{S_T+1}, s{S_RB}, 14
s_add_u32 s{S_T}, s{S_T}, s{S_T+1}
s_lshl_b32 s{S_T+1}, s{S_RT}, 12
s_add_u32 s{S_T}, s{S_T}, s{S_T+1}
s_add_u32 s{S_T}, s{S_T}, {WS_KV+which*2048}""")
    def epi_V(self):
        e=self.e; P=self.ACC
        self.epi_pack(P)
        for i in range(8):
            e(f"v_cndmask_b32 v{P+i}, v{P+i}, v19, s[78:79]")
        self.kv_addr(1)
        e(f"""buffer_store_dwordx4 {vr(P,4)}, v10, {srd(R_WS)}, s{S_T} offen sc1
buffer_store_dwordx4 {vr(P+4,4)}, v10, {srd(R_WS)}, s{S_T} offen offset:1024 sc1""")
    def epi_Q(self):
        e=self.e; P=self.ACC
        e(f"s_mov_b32 s{S_T}, {f2u(QSCALE):#x}")
        for i in range(16):
            e(f"v_mul_f32 v{P+i}, s{S_T}, v{P+i}")
        self.epi_pack(P)
        e(f"""s_mov_b32 exec_lo, 0
v_mov_b32 v{P+6}, 0
v_mov_b32 v{P+7}, 0
s_mov_b64 exec, -1
s_lshl_b32 s{S_T}, s{S_RT}, 11
s_add_u32 s{S_T}, s{S_T}, {L_QX}
v_add_u32 v2, s{S_T}, v10
ds_write_b128 v2, {vr(P,4)}
ds_write_b128 v2, {vr(P+4,4)} offset:1024""")
    def epi_F(self, sft):
        e=self.e; P=self.ACC
        for i in range(16):
            e(f"v_max_f32 v{P+i}, 0, v{P+i}")
        for i in range(16):
            e(f"v_mul_f32 v{P+i}, v{P+i}, v{P+i}")
        self.epi_pack(P)
        e(f"""s_lshl_b32 s{S_T}, s{S_RB}, 2
s_add_u32 s{S_T}, s{S_T}, s{S_RT}
s_mul_i32 s{S_T}, s{S_T}, 112
s_lshl_b32 s{S_T+1}, s{sft}, 1
s_add_u32 s{S_T}, s{S_T}, s{S_T+1}
s_lshl_b32 s{S_T}, s{S_T}, 10
s_add_u32 s{S_T}, s{S_T}, {WS_HF}
buffer_store_dwordx4 {vr(P,4)}, v10, {srd(R_WS)}, s{S_T} offen sc1
buffer_store_dwordx4 {vr(P+4,4)}, v10, {srd(R_WS)}, s{S_T} offen offset:1024 sc1""")

    def main_gemm(self):
        e=self.e; c=self.c
        self.gemm_consts()
        e("s_barrier")
        self.stamp('B4')
        lv=self.L(); l1=self.L()
        e(f"s_cmp_eq_u32 s{S_CP}, 0\ns_cbranch_scc0 {lv}")
        c("S0 cp0: K"); self.gemm_loop("S",True,None,L_A); self.stamp("S0loop"); self.epi_K()
        e(f"s_branch {l1}\n{lv}:")
        c("S0 cp1: V"); self.gemm_loop("S",False,None,L_A+28672); self.stamp("S0loop"); self.epi_V()
        e(f"{l1}:")
        self.stamp("S0epi")
        e("s_barrier")
        self.stamp('B5')
        c("S1: F pair"); self.gemm_loop("P",True,17,L_B)
        self.stamp("S1loop")
        e("s_waitcnt vmcnt(0)")
        self.publish(C_KV,8,0)
        self.stamp("S1pub")
        self.epi_F(74)
        self.stamp("S1epi")
        e("s_barrier")
        self.stamp('B6')
        lhi=self.L(); lq=self.L(); l2=self.L()
        e(f"s_cmp_lt_u32 s{S_HEAD}, 8\ns_cbranch_scc0 {lhi}")
        c("S2 head<8: F pair"); self.gemm_loop("P",True,18,L_A); self.epi_F(75)
        e(f"s_branch {l2}\n{lhi}:\ns_cmp_eq_u32 s{S_CP}, 0\ns_cbranch_scc0 {lq}")
        c("S2 head>=8 cp0: F single"); self.gemm_loop("S",True,18,L_A); self.epi_F(75)
        e(f"s_branch {l2}\n{lq}:")
        c("S2 head>=8 cp1: Q"); self.gemm_loop("S",True,None,L_A+28672); self.epi_Q()
        e(f"{l2}:")
        e("s_barrier")
        self.stamp('B7')
        l3=self.L()
        e(f"""s_cmp_lt_u32 s{S_HEAD}, 8
s_cbranch_scc0 {l3}
s_cmp_eq_u32 s{S_CP}, 0
s_cbranch_scc0 {l3}""")
        c("S3 head<8 cp0: Q"); self.gemm_loop("S",True,None,L_B); self.epi_Q()
        e(f"{l3}:")
        e("s_waitcnt vmcnt(0) lgkmcnt(0)")
        self.publish(C_H,12,1)
        e("s_barrier")
        self.stamp('B8')

    def aux_phase1(self):
        e=self.e; c=self.c
        A=S_RT
        e(f"s_sub_u32 s{A}, s{S_W}, 8")
        l0=self.L()
        e(f"""s_cmp_eq_u32 s{A}, 0
s_cbranch_scc0 {l0}
v_lshlrev_b32 v2, 2, v1
v_add_u32 v2, {L_CNT}, v2
v_mov_b32 v3, 0
ds_write_b32 v2, v3
{l0}:""")
        e(f"""v_lshrrev_b32 v2, 2, v1
v_and_b32 v3, 3, v1
v_lshlrev_b32 v3, 4, v3
v_mul_u32_u24 v4, {WQKV_ROW}, v2
v_add_u32 v4, v4, v3
v_mul_u32_u24 v5, {W1_ROW}, v2
v_add_u32 v5, v5, v3
v_lshrrev_b32 v2, 3, v1
v_bfe_u32 v3, v1, 4, 1
v_lshlrev_b32 v3, 2, v3
v_and_b32 v7, 7, v1
v_xor_b32 v3, v3, v7
v_lshlrev_b32 v3, 4, v3
v_mul_u32_u24 v6, {W1_ROW}, v2
v_add_u32 v6, v6, v3""")
        self.ftile()
        def dma_single(slot, rsrd, vreg, rowstride, scol):
            e(f"""s_mul_i32 s80, s{A}, {112*rowstride}
s_add_u32 s80, s80, s{scol}
s_mul_i32 s81, s{A}, {112*64}
s_add_u32 s81, s81, {slot}""")
            for j in range(7):
                e(f"""s_mov_b32 m0, s81
s_add_u32 s81, s81, 1024
buffer_load_dwordx4 v{vreg}, {srd(rsrd)}, s80 offen lds
s_add_u32 s80, s80, {16*rowstride}""")
        def dma_pair(slot, sft):
            e(f"""s_mul_i32 s80, s{A}, {112*W1_ROW}
s_lshl_b32 s82, s{sft}, 6
s_add_u32 s80, s80, s82
s_mul_i32 s81, s{A}, {112*128}
s_add_u32 s81, s81, {slot}""")
            for j in range(14):
                e(f"""s_mov_b32 m0, s81
s_add_u32 s81, s81, 1024
buffer_load_dwordx4 v6, {srd(R_W1)}, s80 offen lds
s_add_u32 s80, s80, {8*W1_ROW}""")
        e(f"""s_mul_i32 s83, s{S_HEAD}, 56
s_add_u32 s84, s83, 896
s_add_u32 s85, s83, 1792
s_lshl_b32 s86, s73, 6""")
        c("S0 tiles: K,V -> A slots")
        dma_single(L_A, R_WQKV, 4, WQKV_ROW, 84)
        dma_single(L_A+28672, R_WQKV, 4, WQKV_ROW, 85)
        self.aux_wf_job()
        self.epoch_finish()
        e("s_waitcnt lgkmcnt(0)\ns_barrier\ns_barrier\ns_barrier")
        e("s_waitcnt vmcnt(0)\ns_barrier")
        c("S1 tiles: pair -> B")
        dma_pair(L_B, 72)
        e("s_waitcnt vmcnt(0)\ns_barrier")
        lhi=self.L(); l2=self.L()
        e(f"s_cmp_lt_u32 s{S_HEAD}, 8\ns_cbranch_scc0 {lhi}")
        dma_pair(L_A, 73)
        e(f"s_branch {l2}\n{lhi}:")
        dma_single(L_A, R_W1, 5, W1_ROW, 86)
        dma_single(L_A+28672, R_WQKV, 4, WQKV_ROW, 83)
        e(f"{l2}:")
        e("s_waitcnt vmcnt(0)\ns_barrier")
        l3=self.L()
        e(f"s_cmp_lt_u32 s{S_HEAD}, 8\ns_cbranch_scc0 {l3}")
        dma_single(L_B, R_WQKV, 4, WQKV_ROW, 83)
        e(f"{l3}:")
        e("s_waitcnt vmcnt(0)")
        self.publish(C_H,12,1)
        e("s_barrier")
        e("s_barrier")


    def wait_flags(self, phase, sbase, stride, vt=2, st=S_T):
        e=self.e; lp=self.L("L_poll"); ld=self.L("L_polld")
        e(f"""s_mov_b64 exec, 0xffff
v_mul_u32_u24 v{vt+2}, {stride*128}, v1
s_lshl_b32 s{st}, s{sbase}, 7
s_add_u32 s{st}, s{st}, {WS_FLAG+phase*256*128}
v_add_u32 v{vt+2}, s{st}, v{vt+2}
s_mov_b32 s{st+1}, 0
{lp}:
buffer_load_dwordx2 v[{vt}:{vt+1}], v{vt+2}, {srd(R_WS)}, 0 offen sc1
s_add_u32 s{st+1}, s{st+1}, 1
s_waitcnt vmcnt(0)
v_cmp_ne_u32 vcc, s{S_EP}, v{vt}
v_cmp_ne_u32 s[{st+2}:{st+3}], s{S_EP+1}, v{vt+1}
s_or_b64 vcc, vcc, s[{st+2}:{st+3}]
s_cmp_eq_u64 vcc, 0
s_cbranch_scc1 {ld}
s_cmp_gt_u32 s{st+1}, 0x40000
s_cbranch_scc1 {ld}
s_sleep 2
s_branch {lp}
{ld}:
s_mov_b64 exec, -1""")

    def lds_sync(self, cnt_off, starget, vt=2, st=S_T):
        e=self.e; lp=self.L("L_sy"); ld=self.L("L_syd")
        e(f"""s_mov_b64 exec, 1
v_mov_b32 v{vt}, {L_CNT+cnt_off}
v_mov_b32 v{vt+1}, 1
ds_add_u32 v{vt}, v{vt+1}
s_mov_b32 s{st+1}, 0
{lp}:
ds_read_b32 v{vt+1}, v{vt}
s_add_u32 s{st+1}, s{st+1}, 1
s_waitcnt lgkmcnt(0)
v_readfirstlane_b32 s{st}, v{vt+1}
s_cmp_ge_u32 s{st}, s{starget}
s_cbranch_scc1 {ld}
s_cmp_gt_u32 s{st+1}, 0x400000
s_cbranch_scc0 {lp}
{ld}:
s_mov_b64 exec, -1""")

    Q=8; KV=40; SS=72; O=104
    S_KVB=80
    S_ROT=81; S_MODE=82; S_TM=83; S_TO=84; S_TP=85; S_HI=86
    def kv_soff(self, j, dst):
        self.e(f"""s_add_u32 s{dst}, s{self.S_ROT}, {j}
s_and_b32 s{dst}, s{dst}, 7
s_lshl_b32 s{dst}, s{dst}, 12
s_add_u32 s{dst}, s{dst}, s{self.S_KVB}""")
    def ldK(self,j,dst=88):
        b=self.KV+16*(j&1)
        self.kv_soff(j,dst)
        self.e(f"buffer_load_dwordx4 {vr(b,4)}, v2, {srd(R_WS)}, s{dst} offen sc1")
        self.e(f"buffer_load_dwordx4 {vr(b+4,4)}, v2, {srd(R_WS)}, s{dst} offen offset:1024 sc1")
    def ldV(self,j,dst=89):
        b=self.KV+16*(j&1)
        self.kv_soff(j,dst)
        self.e(f"buffer_load_dwordx4 {vr(b+8,4)}, v2, {srd(R_WS)}, s{dst} offen offset:2048 sc1")
        self.e(f"buffer_load_dwordx4 {vr(b+12,4)}, v2, {srd(R_WS)}, s{dst} offen offset:3072 sc1")

    def est_tile(self, first):
        e=self.e
        for qt in range(4):
            Sr=self.SS+16*(qt&1); q=self.Q+8*qt
            e(f"v_mfma_f32_32x32x16_bf16 {vr(Sr,16)}, {vr(self.KV,4)}, {vr(q,4)}, 0")
            e(f"v_mfma_f32_32x32x16_bf16 {vr(Sr,16)}, {vr(self.KV+4,4)}, {vr(q+4,4)}, {vr(Sr,16)}")
            if qt>0: self.est_max(qt-1, first)
        self.est_max(3, first)
    def est_max(self, qt, first):
        e=self.e; Sr=self.SS+16*(qt&1); m=3+qt
        if first:
            e(f"v_max3_f32 v{m}, v{Sr}, v{Sr+1}, v{Sr+2}")
            rest=list(range(3,16))
        else:
            rest=list(range(0,16))
        while len(rest)>=2:
            a,b=rest[0],rest[1]; rest=rest[2:]
            e(f"v_max3_f32 v{m}, v{m}, v{Sr+a}, v{Sr+b}")
        if rest: e(f"v_max_f32 v{m}, v{m}, v{Sr+rest[0]}")

    def attention(self):
        e=self.e; c=self.c
        Q,KV,SS,O=self.Q,self.KV,self.SS,self.O
        c("==== attention ====")
        e(f"""v_lshlrev_b32 v2, 4, v1
s_setprio 1""")
        e(f"v_add_u32 v3, {L_QX}, v2")
        for qt in range(4):
            e(f"ds_read_b128 {vr(Q+8*qt,4)}, v3 offset:{qt*2048}")
            e(f"ds_read_b128 {vr(Q+8*qt+4,4)}, v3 offset:{qt*2048+1024}")
        e(f"""s_lshl_b32 s{self.S_KVB}, s{S_HEAD}, 18
s_lshl_b32 s{S_T}, s{S_W}, 15
s_add_u32 s{self.S_KVB}, s{self.S_KVB}, s{S_T}
s_add_u32 s{self.S_KVB}, s{self.S_KVB}, {WS_KV}
s_lshr_b32 s{self.S_ROT}, s{S_RB}, 1
s_mov_b32 s{self.S_MODE}, 0
s_mov_b32 s{self.S_TM}, 8
s_mov_b32 s{self.S_TO}, 8
s_mov_b32 s{self.S_TP}, 8
s_mov_b32 s{self.S_HI}, 0
s_lshl_b32 s90, s{S_HEAD}, 4""")
        self.wait_flags(0, 90, 1, vt=4)
        self.stamp("kvflag")
        e("L_attn_retry:")
        e("s_waitcnt lgkmcnt(0)\ns_mov_b32 exec_lo, 0")
        for qt in range(4): e(f"v_mov_b32 v{Q+8*qt+6}, 0")
        e("s_mov_b64 exec, -1")
        lsafe=self.L("L_safe"); lest=self.L("L_estd")
        e(f"s_cmp_eq_u32 s{self.S_MODE}, 0\ns_cbranch_scc0 {lsafe}")
        c("fast estimate: first key tile")
        self.ldK(0); self.ldV(0); self.ldK(1); self.ldV(1)
        e("s_waitcnt vmcnt(6)")
        self.est_tile(True)
        e(f"s_branch {lest}\n{lsafe}:")
        c("safe estimate: true max over all 8 key tiles of this wave")
        lsl=self.L("L_safel")
        for m in range(3,7): e(f"v_mov_b32 v{m}, 0xff800000")
        e(f"s_mov_b32 s91, 0\n{lsl}:")
        e(f"""s_lshl_b32 s88, s91, 12
s_add_u32 s88, s88, s{self.S_KVB}
buffer_load_dwordx4 {vr(KV,4)}, v2, {srd(R_WS)}, s88 offen sc1
buffer_load_dwordx4 {vr(KV+4,4)}, v2, {srd(R_WS)}, s88 offen offset:1024 sc1
s_waitcnt vmcnt(0)""")
        self.est_tile(False)
        e(f"""s_add_u32 s91, s91, 1
s_cmp_lt_u32 s91, 8
s_cbranch_scc1 {lsl}""")
        self.ldK(0); self.ldV(0); self.ldK(1); self.ldV(1)
        e(f"{lest}:")
        c("cross-half max, exchange across waves")
        for qt in range(4):
            m=3+qt
            e(f"v_mov_b32 v7, v{m}\nv_permlane32_swap_b32 v7, v{m}\nv_max_f32 v{m}, v{m}, v7")
        e(f"""v_and_b32 v7, 31, v1
v_lshlrev_b32 v7, 5, v7
v_add_u32 v7, {L_MX}, v7
s_lshl_b32 s{S_T}, s{S_W}, 2
v_add_u32 v{SS}, s{S_T}, v7""")
        for qt in range(4):
            e(f"ds_write_b32 v{SS}, v{3+qt} offset:{qt*1024}")
        e("s_waitcnt lgkmcnt(0)")
        self.lds_sync(C_M, self.S_TM, vt=3)
        e(f"s_add_u32 s{self.S_TM}, s{self.S_TM}, 8")
        for qt in range(4):
            e(f"ds_read_b128 {vr(SS+8*qt,4)}, v7 offset:{qt*1024}")
            e(f"ds_read_b128 {vr(SS+8*qt+4,4)}, v7 offset:{qt*1024+16}")
        for qt in range(4):
            b=SS+8*qt
            e(f"s_waitcnt lgkmcnt({6-2*qt})")
            e(f"""v_max3_f32 v3, v{b}, v{b+1}, v{b+2}
v_max3_f32 v3, v3, v{b+3}, v{b+4}
v_max3_f32 v3, v3, v{b+5}, v{b+6}
v_max_f32 v3, v3, v{b+7}
v_add_f32 v3, {f2u(M_OFF):#x}, v3
v_sub_f32 v3, 0, v3
v_cvt_pk_bf16_f32 v4, v3, v3
v_lshlrev_b32 v4, 16, v4
v_sub_f32 v4, v3, v4
v_cvt_pk_bf16_f32 v4, v3, v4
s_mov_b32 exec_lo, 0
v_mov_b32 v{Q+8*qt+6}, v4
s_mov_b64 exec, -1""")
        self.stamp("est")
        steps=[(j,qt) for j in range(6) for qt in range(4)]+[(6,0),(6,1),(7,0),(6,2),(7,1),(6,3),(7,2),(7,3)]
        N=len(steps)
        vm=[("K",0),("K",0),("V",0),("V",0),("K",1),("K",1),("V",1),("V",1)]
        waited=set()
        def need_vm(tag):
            if tag in waited: return
            idx=max(i for i,t in enumerate(vm) if t==tag)
            e(f"s_waitcnt vmcnt({len(vm)-1-idx})")
            for t in vm[:idx+1]: waited.add(t)
        lastK={}; lastV={}; lastO={}
        for n,(j,qt) in enumerate(steps): lastK[j]=n; lastV[j]=n; lastO[qt]=n
        firstO=set()
        def Sreg(n): return SS+16*(n&1)
        def QK(n,part):
            j,qt=steps[n]; b=KV+16*(j&1); Sr=vr(Sreg(n),16); q=Q+8*qt
            if part==0:
                need_vm(("K",j))
                e(f"v_mfma_f32_32x32x16_bf16 {Sr}, {vr(b,4)}, {vr(q,4)}, 0")
            else:
                e(f"v_mfma_f32_32x32x16_bf16 {Sr}, {vr(b+4,4)}, {vr(q+4,4)}, {Sr}")
                if lastK[j]==n and j+2<8:
                    self.ldK(j+2); vm.extend([("K",j+2)]*2)
        def PV(n,part):
            j,qt=steps[n]; b=KV+16*(j&1); Or=vr(O+16*qt,16); P=Sreg(n)
            if part==0:
                need_vm(("V",j))
                cin = Or if qt in firstO else "0"
                firstO.add(qt)
                e(f"v_mfma_f32_32x32x16_bf16 {Or}, {vr(b+8,4)}, {vr(P,4)}, {cin}")
            else:
                e(f"v_mfma_f32_32x32x16_bf16 {Or}, {vr(b+12,4)}, {vr(P+4,4)}, {Or}")
                if lastV[j]==n and j+2<8:
                    self.ldV(j+2); vm.extend([("V",j+2)]*2)
        def E(n,i): r=Sreg(n)+i; e(f"v_exp_f32 v{r}, v{r}")
        def C(n,i): r=Sreg(n); e(f"v_cvt_pk_bf16_f32 v{r+i}, v{r+2*i}, v{r+2*i+1}")
        e(f"s_mul_i32 s{S_T}, s{S_W}, 16384\nv_add_u32 v3, s{S_T}, v2")
        def Owrite(qt):
            for g in range(4):
                e(f"ds_write_b128 v3, {vr(O+16*qt+4*g,4)} offset:{L_O+qt*4096+g*1024}")
        QK(0,0); QK(0,1)
        pendingO=[]
        for n in range(N):
            E(n,0);E(n,1)
            if n>0:
                PV(n-1,1)
                if lastO[steps[n-1][1]]==n-1: pendingO.append((steps[n-1][1],n))
            E(n,2);E(n,3);E(n,4);E(n,5)
            if n+1<N: QK(n+1,0)
            C(n,0);E(n,6);E(n,7);C(n,1);E(n,8);E(n,9)
            if n+1<N: QK(n+1,1)
            C(n,2);E(n,10);E(n,11);C(n,3);E(n,12);E(n,13)
            PV(n,0)
            E(n,14);E(n,15);C(n,4);C(n,5);C(n,6);C(n,7)
            for (q_,at) in list(pendingO):
                if at<=n: Owrite(q_); pendingO.remove((q_,at))
        PV(N-1,1)
        Owrite(steps[N-1][1])
        self.stamp("loop")
        c("combine partial O across waves")
        e("s_waitcnt lgkmcnt(0)")
        self.lds_sync(C_O, self.S_TO, vt=4)
        e(f"s_add_u32 s{self.S_TO}, s{self.S_TO}, 8")
        e(f"""s_lshr_b32 s92, s{S_W}, 1
s_and_b32 s93, s{S_W}, 1
s_lshl_b32 s{S_T}, s92, 12
s_lshl_b32 s{S_T+1}, s93, 11
s_add_u32 s{S_T+1}, s{S_T+1}, s{S_T}
v_add_u32 v4, s{S_T+1}, v2
v_add_u32 v5, 0x10000, v4
v_and_b32 v6, 31, v1
v_lshlrev_b32 v6, 4, v6
s_add_u32 s{S_T}, s{S_T}, {3*1024+32*16}
v_add_u32 v6, s{S_T}, v6
v_add_u32 v7, 0x10000, v6""")
        for p in range(8):
            e(f"ds_read_b32 v{SS+p}, v{6 if p<4 else 7} offset:{L_O+(p&3)*16384}")
        for p in range(8):
            a=4 if p<4 else 5
            e(f"ds_read_b128 {vr(O+8*p,4)}, v{a} offset:{L_O+(p&3)*16384}")
            e(f"ds_read_b128 {vr(O+8*p+4,4)}, v{a} offset:{L_O+(p&3)*16384+1024}")
        e("s_waitcnt lgkmcnt(12)")
        for p in range(1,8): e(f"v_add_f32 v{SS}, v{SS}, v{SS+p}")
        e(f"v_rcp_f32 v{SS+1}, v{SS}")
        for p in range(1,8):
            e(f"s_waitcnt lgkmcnt({max(0,14-2*p)})")
            for r in range(8): e(f"v_add_f32 v{O+r}, v{O+r}, v{O+8*p+r}")
        e(f"""s_mov_b32 s94, {f2u(2.0**100):#x}
s_movk_i32 s95, 0x207
v_cmp_nlt_f32 s[76:77], v{SS}, s94
v_cmp_nlt_f32 vcc, 0, v{SS}
s_or_b64 s[76:77], s[76:77], vcc""")
        for r in range(8):
            e(f"v_cmp_class_f32 vcc, v{O+r}, s95\ns_or_b64 s[76:77], s[76:77], vcc".replace(f"v_cmp_class_f32 vcc, v{O+r}, s95",f"v_cmp_class_f32_e64 vcc, v{O+r}, s95"))
        for r in range(8): e(f"v_mul_f32 v{O+r}, v{O+r}, v{SS+1}")
        for i in range(4): e(f"v_cvt_pk_bf16_f32 v{O+i}, v{O+2*i}, v{O+2*i+1}")
        lh=self.L()
        e(f"""s_cmp_eq_u32 s93, 0
s_cbranch_scc1 {lh}
s_mov_b32 exec_lo, 0
v_mov_b32 v{O+2}, 0
v_mov_b32 v{O+3}, 0
s_mov_b64 exec, -1
{lh}:
s_lshl_b32 s{S_T}, s{S_RB}, 2
s_add_u32 s{S_T}, s{S_T}, s92
s_lshl_b32 s{S_T}, s{S_T}, 4
s_add_u32 s{S_T}, s{S_T}, s{S_HEAD}
s_lshl_b32 s{S_T}, s{S_T}, 1
s_add_u32 s{S_T}, s{S_T}, s93
s_lshl_b32 s{S_T}, s{S_T}, 10
s_add_u32 s{S_T}, s{S_T}, {WS_OF}
buffer_store_dwordx4 {vr(O,4)}, v2, {srd(R_WS)}, s{S_T} offen sc1
s_cmp_eq_u64 s[76:77], 0
s_cselect_b32 s94, 1, 0x10001
s_waitcnt vmcnt(0)""")
        self.stamp("ostored")
        lnp=self.L("L_np"); lsp=self.L("L_sp"); lok=self.L("L_ok"); lpub=self.L("L_dopub")
        e(f"""s_mov_b64 exec, 1
v_mov_b32 v4, {L_CNT+C_P}
v_mov_b32 v5, s94
ds_add_rtn_u32 v5, v4, v5
s_waitcnt lgkmcnt(0)
v_readfirstlane_b32 s{S_T}, v5
s_add_u32 s{S_T}, s{S_T}, s94
s_and_b32 s{S_T+1}, s{S_T}, 0xffff
s_cmp_eq_u32 s{S_T+1}, s{self.S_TP}
s_cbranch_scc0 {lnp}
s_lshr_b32 s{S_T+1}, s{S_T}, 16
s_cmp_eq_u32 s{S_T+1}, s{self.S_HI}
s_cbranch_scc1 {lpub}
s_cmp_eq_u32 s{self.S_MODE}, 0
s_cbranch_scc1 {lnp}
{lpub}:
s_lshl_b32 s{S_T}, s{S_HEAD}, 4
s_add_u32 s{S_T}, s{S_T}, s{S_RB}
s_lshl_b32 s{S_T}, s{S_T}, 7
s_add_u32 s{S_T}, s{S_T}, {WS_FLAG + 2*256*128}
v_mov_b32 v6, s{S_T}
v_mov_b32 v4, s{S_EP}
v_mov_b32 v5, s{S_EP+1}
buffer_store_dwordx2 v[4:5], v6, {srd(R_WS)}, 0 offen sc1
s_mov_b64 exec, -1
s_waitcnt vmcnt(0)
s_endpgm
{lnp}:
v_mov_b32 v4, {L_CNT+C_P}
s_mov_b32 s{S_T+2}, 0
{lsp}:
ds_read_b32 v5, v4
s_add_u32 s{S_T+2}, s{S_T+2}, 1
s_waitcnt lgkmcnt(0)
v_readfirstlane_b32 s{S_T}, v5
s_and_b32 s{S_T+1}, s{S_T}, 0xffff
s_cmp_ge_u32 s{S_T+1}, s{self.S_TP}
s_cbranch_scc1 {lok}
s_cmp_gt_u32 s{S_T+2}, 0x400000
s_cbranch_scc0 {lsp}
{lok}:
s_mov_b64 exec, -1
s_lshr_b32 s{S_T+1}, s{S_T}, 16
s_cmp_eq_u32 s{S_T+1}, s{self.S_HI}
s_cbranch_scc1 L_main_exit
s_cmp_eq_u32 s{self.S_MODE}, 0
s_cbranch_scc0 L_main_exit
s_mov_b32 s{self.S_MODE}, 1
s_mov_b32 s{self.S_HI}, s{S_T+1}
s_add_u32 s{self.S_TP}, s{self.S_TP}, 8
s_branch L_attn_retry
L_main_exit:""")


    def aux_wf_job(self):
        e=self.e; A=S_RT; ls=self.L("L_wfskip"); lwo=self.L(); lj=self.L()
        e(f"""s_lshl_b32 s88, s{S_WG}, 2
s_add_u32 s88, s88, s{A}
s_cmp_ge_u32 s88, 1008
s_cbranch_scc1 {ls}
s_mul_i32 s89, s88, 7282
s_lshr_b32 s89, s89, 20
s_mul_i32 s90, s89, 144
s_sub_u32 s90, s88, s90
v_lshrrev_b32 v8, 3, v1
v_mul_u32_u24 v8, 896, v8
v_bfe_u32 v9, v1, 4, 1
v_lshlrev_b32 v9, 2, v9
v_and_b32 v10, 7, v1
v_xor_b32 v9, v9, v10
v_lshl_add_u32 v8, v9, 4, v8
s_mul_i32 s91, s{A}, 2048
s_add_u32 s91, s91, {L_RING}
s_lshl_b32 s92, s89, 7
s_cmp_lt_u32 s90, 112
s_cbranch_scc0 {lwo}
s_mul_i32 s93, s90, {16*896}
s_add_u32 s93, s93, s92
s_mov_b32 m0, s91
s_add_u32 s94, s93, {8*896}
buffer_load_dwordx4 v8, {srd(R_W2)}, s93 offen lds
s_add_u32 s95, s91, 1024
s_mov_b32 m0, s95
s_nop 0
buffer_load_dwordx4 v8, {srd(R_W2)}, s94 offen lds
s_branch {lj}
{lwo}:
s_sub_u32 s93, s90, 112
s_lshr_b32 s94, s93, 1
s_mul_i32 s94, s94, 28
s_and_b32 s93, s93, 1
s_lshl_b32 s93, s93, 4
s_add_u32 s93, s93, s94
s_mul_i32 s93, s93, 896
s_add_u32 s93, s93, s92
s_mov_b32 m0, s91
s_add_u32 s94, s93, {8*896}
buffer_load_dwordx4 v8, {srd(R_WO)}, s93 offen lds
s_add_u32 s95, s91, 1024
s_mov_b32 m0, s95
s_nop 0
buffer_load_dwordx4 v8, {srd(R_WO)}, s94 offen lds
{lj}:
v_lshrrev_b32 v9, 4, v1
v_and_b32 v10, 15, v1
v_lshrrev_b32 v11, 2, v10
v_and_b32 v10, 3, v10
v_lshrrev_b32 v12, 1, v9
v_and_b32 v9, 1, v9
v_lshl_add_u32 v12, v12, 2, v11
v_lshlrev_b32 v12, 7, v12
v_lshrrev_b32 v11, 1, v11
v_lshl_add_u32 v12, v11, 6, v12
v_lshl_add_u32 v12, v9, 5, v12
v_lshl_add_u32 v12, v10, 3, v12
v_add_u32 v12, s91, v12
v_xor_b32 v13, 64, v12
s_waitcnt vmcnt(0)
ds_read_b64_tr_b16 v[16:17], v12
ds_read_b64_tr_b16 v[18:19], v12 offset:1024
ds_read_b64_tr_b16 v[20:21], v13
ds_read_b64_tr_b16 v[22:23], v13 offset:1024
s_lshl_b32 s93, s88, 11
s_add_u32 s93, s93, {WS_WF}
v_lshlrev_b32 v14, 4, v1
s_waitcnt lgkmcnt(0)
buffer_store_dwordx4 v[16:19], v14, {srd(R_WS)}, s93 offen sc1
buffer_store_dwordx4 v[20:23], v14, {srd(R_WS)}, s93 offen offset:1024 sc1
{ls}:""")

    def aux_phase2(self):
        e=self.e; c=self.c; A=S_RT
        ACC=104; RB=8; ND=6
        c("==== aux: FFN2 + wo ====")
        lex=self.L("L_auxexit")
        e(f"""s_lshr_b32 s68, s{S_WG}, 3
s_cmp_ge_u32 s68, 28
s_cbranch_scc1 {lex}
s_mul_i32 s69, s68, 37
s_lshr_b32 s69, s69, 8
s_mul_i32 s70, s69, 7
s_sub_u32 s71, s68, s70
s_and_b32 s70, s{S_WG}, 7
s_lshl_b32 s70, s70, 2
s_add_u32 s70, s70, s69
s_setprio 2
v_lshlrev_b32 v2, 4, v1""")
        lp=self.L("L_hp"); ld=self.L("L_hd")
        e(f"""s_lshr_b32 s72, s70, 1
v_lshlrev_b32 v3, 4, v1
v_add_u32 v3, s72, v3
s_mul_i32 s73, s71, 36
s_sub_u32 s73, s73, 16
v_add_u32 v4, s73, v1
v_and_b32 v5, 7, v4
v_lshlrev_b32 v5, 1, v5
v_bfe_u32 v6, v4, 3, 1
v_add_u32 v5, v5, v6
v_lshlrev_b32 v5, 4, v5
v_lshrrev_b32 v6, 4, v4
v_add_u32 v5, v5, v6
v_cmp_gt_u32 vcc, 16, v1
v_cndmask_b32 v3, v5, v3, vcc
v_lshlrev_b32 v3, 7, v3
v_add_u32 v3, {WS_FLAG+256*128}, v3
s_mov_b32 exec_lo, -1
s_mov_b32 exec_hi, 0xfffff
s_mov_b32 s74, 0
{lp}:
buffer_load_dwordx2 v[4:5], v3, {srd(R_WS)}, 0 offen sc1
s_add_u32 s74, s74, 1
s_waitcnt vmcnt(0)
v_cmp_ne_u32 vcc, s{S_EP}, v4
v_cmp_ne_u32 s[76:77], s{S_EP+1}, v5
s_or_b64 vcc, vcc, s[76:77]
s_cmp_eq_u64 vcc, 0
s_cbranch_scc1 {ld}
s_cmp_gt_u32 s74, 0x40000
s_cbranch_scc1 {ld}
s_sleep 8
s_branch {lp}
{ld}:
s_mov_b64 exec, -1""")
        self.stamp("hflag","a")
        e(f"""s_mul_i32 s78, s70, {2*112}
s_mul_i32 s75, s{A}, 28
s_add_u32 s78, s78, s75
s_lshl_b32 s78, s78, 10
s_add_u32 s78, s78, {WS_HF}
s_add_u32 s80, s78, {112*1024}
s_mul_i32 s79, s71, 144
s_add_u32 s81, s79, s75
s_lshl_b32 s81, s81, 11
s_add_u32 s81, s81, {WS_WF}""")
        vm=[]
        def ld_step(s):
            b=RB+16*(s%ND)
            e(f"buffer_load_dwordx4 {vr(b,4)}, v2, {srd(R_WS)}, s78 offen sc1")
            e(f"buffer_load_dwordx4 {vr(b+4,4)}, v2, {srd(R_WS)}, s80 offen sc1")
            e(f"buffer_load_dwordx4 {vr(b+8,4)}, v2, {srd(R_WS)}, s81 offen sc1")
            e(f"buffer_load_dwordx4 {vr(b+12,4)}, v2, {srd(R_WS)}, s81 offen offset:1024 sc1")
            e("s_add_u32 s78, s78, 1024\ns_add_u32 s80, s80, 1024\ns_add_u32 s81, s81, 2048")
            vm.extend([s]*4)
        def mm(s,h0,h1,w0,w1,first):
            for nt,w in ((0,w0),(1,w1)):
                for tl,h in ((0,h0),(1,h1)):
                    acc=vr(ACC+16*(nt*2+tl),16)
                    e(f"v_mfma_f32_32x32x16_bf16 {acc}, {vr(w,4)}, {vr(h,4)}, {'0' if first else acc}")
        for s in range(ND): ld_step(s)
        for s in range(28):
            idx=max(i for i,t in enumerate(vm) if t==s)
            e(f"s_waitcnt vmcnt({len(vm)-1-idx})")
            b=RB+16*(s%ND)
            mm(s,b,b+4,b+8,b+12,s==0)
            if s+ND<28: ld_step(s+ND)
        self.stamp("ffn2","a")
        e(f"""s_lshl_b32 s75, s{A}, 3
s_add_u32 s81, s79, s75
s_add_u32 s81, s81, 112
s_lshl_b32 s81, s81, 11
s_add_u32 s81, s81, {WS_WF}""")
        for t in range(4):
            e(f"buffer_load_dwordx4 {vr(8+8*t,4)}, v2, {srd(R_WS)}, s81 offen sc1")
            e(f"buffer_load_dwordx4 {vr(8+8*t+4,4)}, v2, {srd(R_WS)}, s81 offen offset:1024 sc1")
            e("s_add_u32 s81, s81, 2048")
        e(f"s_lshr_b32 s72, s70, 1")
        self.wait_flags(2, 72, 16, vt=4, st=84)
        self.stamp("oflag","a")
        e(f"""s_lshl_b32 s78, s70, 6
s_add_u32 s78, s78, s75
s_lshl_b32 s78, s78, 10
s_add_u32 s78, s78, {WS_OF}
s_add_u32 s80, s78, {32*1024}""")
        vm=[]
        for t in range(8):
            e(f"buffer_load_dwordx4 {vr(40+8*t,4)}, v2, {srd(R_WS)}, s78 offen sc1")
            e(f"buffer_load_dwordx4 {vr(40+8*t+4,4)}, v2, {srd(R_WS)}, s80 offen sc1")
            e("s_add_u32 s78, s78, 1024\ns_add_u32 s80, s80, 1024")
            vm.extend([("o",t)]*2)
        for t in range(8):
            tag=("o",t) if t<4 else ("w",t)
            idx=max(i for i,x in enumerate(vm) if x==tag)
            idx2=max(i for i,x in enumerate(vm) if x==("o",t))
            idx=max(idx,idx2)
            e(f"s_waitcnt vmcnt({len(vm)-1-idx})")
            wb=8+8*(t&3); ob=40+8*t
            mm(t,ob,ob+4,wb,wb+4,False)
            if t<4:
                e(f"buffer_load_dwordx4 {vr(wb,4)}, v2, {srd(R_WS)}, s81 offen sc1")
                e(f"buffer_load_dwordx4 {vr(wb+4,4)}, v2, {srd(R_WS)}, s81 offen offset:1024 sc1")
                e("s_add_u32 s81, s81, 2048")
                vm.extend([("w",t+4)]*2)
        self.stamp("wo","a")
        e(f"""v_and_b32 v3, 7, v1
v_lshrrev_b32 v4, 3, v1
s_lshl_b32 s75, s{A}, 4
v_add_u32 v4, s75, v4
s_lshl_b32 s76, s70, 6
v_add_u32 v5, s76, v4
v_mul_u32_u24 v5, 896, v5
v_lshl_add_u32 v5, v3, 4, v5
s_lshl_b32 s77, s71, 7
v_lshlrev_b32 v6, 4, v3
buffer_load_dwordx4 v[8:11], v5, {srd(R_X)}, s77 offen
s_add_u32 s82, s77, {8*896}
buffer_load_dwordx4 v[12:15], v5, {srd(R_X)}, s82 offen
buffer_load_dwordx4 v[16:19], v6, {srd(R_B2)}, s77 offen
s_barrier""")
        e(f"s_lshl_b32 s75, s{A}, 14")
        for nt in range(2):
            for g in range(4):
                c8=nt*4+g; k=(c8^((c8&1)<<3))*16
                e(f"v_xor_b32 v7, {k}, v2\nv_add_u32 v7, s75, v7")
                for tl in range(2):
                    T=nt*2+tl
                    e(f"ds_write_b128 v7, {vr(ACC+16*T+4*g,4)} offset:{T*4096+g*1024}")
        e("s_waitcnt lgkmcnt(0)\ns_barrier")
        for u in range(2):
            e(f"""v_add_u32 v20, {8*u}, v4
v_lshrrev_b32 v21, 5, v20
v_and_b32 v20, 31, v20
v_and_b32 v22, 1, v3
v_lshlrev_b32 v22, 3, v22
v_xor_b32 v22, v22, v3
v_xor_b32 v20, v20, v22
v_lshlrev_b32 v20, 4, v20
v_lshrrev_b32 v22, 2, v3
v_lshl_add_u32 v21, v22, 1, v21
v_lshl_add_u32 v20, v21, 12, v20
v_and_b32 v22, 3, v3
v_lshl_add_u32 v20, v22, 10, v20""")
            base=40+32*u
            for p in range(4):
                e(f"ds_read_b128 {vr(base+8*p,4)}, v20 offset:{p*16384}")
                e(f"ds_read_b128 {vr(base+8*p+4,4)}, v20 offset:{p*16384+512}")
        e("s_waitcnt vmcnt(0)")
        for i in range(4):
            e(f"v_lshlrev_b32 v{24+2*i}, 16, v{16+i}\nv_and_b32 v{25+2*i}, 0xffff0000, v{16+i}")
        for u in range(2):
            base=40+32*u; xr=8+4*u
            e(f"s_waitcnt lgkmcnt({8 if u==0 else 0})")
            for r in range(8):
                e(f"v_add_f32 v{base+r}, v{base+r}, v{base+8+r}")
                e(f"v_add_f32 v{base+16+r}, v{base+16+r}, v{base+24+r}")
            for r in range(8):
                e(f"v_add_f32 v{base+r}, v{base+r}, v{base+16+r}")
            for i in range(4):
                e(f"v_lshlrev_b32 v32, 16, v{xr+i}\nv_and_b32 v33, 0xffff0000, v{xr+i}")
                e(f"v_add_f32 v32, v32, v{24+2*i}\nv_add_f32 v33, v33, v{25+2*i}")
                e(f"v_add_f32 v{base+2*i}, v{base+2*i}, v32\nv_add_f32 v{base+2*i+1}, v{base+2*i+1}, v33")
            for i in range(4):
                e(f"v_cvt_pk_bf16_f32 v{base+i}, v{base+2*i}, v{base+2*i+1}")
            e(f"buffer_store_dwordx4 {vr(base,4)}, v5, {srd(R_OUT)}, s{77 if u==0 else 82} offen")
        lns=self.L()
        e(f"""s_or_b32 s75, s{S_WG}, s{A}
s_cmp_eq_u32 s75, 0
s_cbranch_scc0 {lns}
s_mov_b64 exec, 1
v_mov_b32 v20, {WS_EPOCH}
v_mov_b32 v22, s{S_EP}
v_mov_b32 v23, s{S_EP+1}
buffer_store_dwordx2 v[22:23], v20, {srd(R_WS)}, 0 offen
{lns}:
s_waitcnt vmcnt(0)""")
        self.stamp("end","a")
        e(f"{lex}:")

    def dump_q(self):
        e=self.e
        e(f"""s_lshl_b32 s{S_T}, s{S_W}, 10
v_add_u32 v2, s{S_T}, v10
v_add_u32 v2, {L_QX}, v2
ds_read_b128 v[24:27], v2
s_lshl_b32 s{S_T+1}, s{S_WG}, 13
s_add_u32 s{S_T}, s{S_T}, s{S_T+1}
s_add_u32 s{S_T}, s{S_T}, {WS_DBG+0x100000}
s_waitcnt lgkmcnt(0)
buffer_store_dwordx4 v[24:27], v10, {srd(R_WS)}, s{S_T} offen
s_waitcnt vmcnt(0)""")

    def build(self):
        o=self.o; e=self.e
        hdr=f"""; Fused persistent kernel: LN + QKV/FFN1 GEMM -> attention -> FFN2/wo GEMM (generated)
; @launch grid=(256,1,1) block=(768,1,1) lds={LDS_SIZE}
.amdgcn_target "amdgcn-amd-amdhsa--gfx950"
.text
.globl {NAME}
.p2align 8
.type {NAME},@function
{NAME}:
"""
        self.prologue()
        self.stamp('start')
        self.main_ln()
        self.stamp('ln_done')
        self.main_gemm()
        if o.get("stop")=="p1":
            self.dump_q()
        else:
            self.attention()
        e("s_endpgm")
        e("L_aux:")
        self.stamp("start","a")
        self.aux_phase1()
        self.stamp("p1done","a")
        if o.get("stop") not in ("p1","p2"):
            self.aux_phase2()
        e("s_endpgm")
        e("L_exit:\ns_endpgm")
        pads=self.a.fix_hazards(o.get("verbose",False))
        tail=f"""
.section .rodata,"a"
.p2align 6
.amdhsa_kernel {NAME}
  .amdhsa_next_free_vgpr 168
  .amdhsa_next_free_sgpr 102
  .amdhsa_accum_offset 168
  .amdhsa_group_segment_fixed_size 0
  .amdhsa_kernarg_size 88
  .amdhsa_user_sgpr_count 2
  .amdhsa_user_sgpr_kernarg_segment_ptr 1
  .amdhsa_system_sgpr_workgroup_id_x 1
.end_amdhsa_kernel
"""
        return hdr+self.a.text()+tail, pads

if __name__=="__main__":
    import argparse
    ap=argparse.ArgumentParser()
    ap.add_argument("-o",default="k.s"); ap.add_argument("--stop",default=None)
    ap.add_argument("--stamps",action="store_true"); ap.add_argument("-v",action="store_true")
    a=ap.parse_args()
    g=G({"stop":a.stop,"stamps":a.stamps,"verbose":a.v})
    txt,pads=g.build()
    open(a.o,"w").write(txt)
    import json; json.dump(g.stamps,open(a.o+".stamps.json","w"))
    print("written",a.o,"lines",txt.count("\n"),"pad states",pads)
```
